```python
import torch

def _softmax(x, axis=-1):
    return torch.softmax(x, dim=axis)
def _gelu(x):
    return torch.nn.functional.gelu(x, approximate="tanh")
def _silu(x):
    return torch.nn.functional.silu(x)
def _sigmoid(x):
    return torch.sigmoid(x)
def _layernorm(x, axis=-1, eps=1e-5):
    m = x.mean(dim=axis, keepdim=True)
    v = x.var(dim=axis, keepdim=True, unbiased=False)
    return (x - m) / torch.sqrt(v + eps)
def _scatter_add(tgt, idx, src, axis=0):
    return tgt.clone().index_add_(axis, idx, src)
def _segment_sum(src, seg, n):
    out = torch.zeros((n,) + src.shape[1:], dtype=src.dtype)
    return out.index_add_(0, seg, src)
def _pad(x, pw):
    flat = tuple(v for pair in reversed(pw) for v in pair)
    return torch.nn.functional.pad(x, flat)

kernel_name = 'concat_heads__grouped_kv_mqa__mha_block__prompt'

def setup_inputs():

    _w = (lambda a: (lambda t: t.to(torch.bfloat16) if t.is_floating_point() else t)(torch.as_tensor(a)))
    def _A_setup():
        B, S, D, H = 1, 2048, 640, 32
        Dh = D // H
        return {
            "x": _w((lambda *s: torch.randn(*s, dtype=torch.bfloat16) * 0.05)(B, S, D)),
            "wq": _w((lambda *s: torch.randn(*s, dtype=torch.bfloat16) * 0.8)(D, H * Dh)),
            "wk": _w((lambda *s: torch.randn(*s, dtype=torch.bfloat16) * 0.8)(D, Dh)),
            "wv": _w((lambda *s: torch.randn(*s, dtype=torch.bfloat16) * 0.1)(D, Dh)),
            "wo": _w((lambda *s: torch.randn(*s, dtype=torch.bfloat16) * 0.1)(H * Dh, D)),
        }
    _A_in = _A_setup()

    def _B_setup():
        B, S, D, H = 1, 2048, 640, 32
        return {
            "x": _w((lambda *s: torch.randn(*s, dtype=torch.bfloat16) * 0.2)(B, S, D)),
            "wqkv": _w((lambda *s: torch.randn(*s, dtype=torch.bfloat16) * 0.2)(D, 3 * D)),
            "wo": _w((lambda *s: torch.randn(*s, dtype=torch.bfloat16) * 0.05)(D, D)),
        }
    _B_in = _B_setup()

    return {
        "A_x": _A_in["x"],
        "A_wq": _A_in["wq"],
        "A_wk": _A_in["wk"],
        "A_wv": _A_in["wv"],
        "A_wo": _A_in["wo"],
        "B_x": _B_in["x"],
        "B_wqkv": _B_in["wqkv"],
        "B_wo": _B_in["wo"],
    }

def reference(A_x, A_wq, A_wk, A_wv, A_wo, B_x, B_wqkv, B_wo):
    def _A_ref(x, wq, wk, wv, wo):
        B, S, D = x.shape
        H = 32
        Dh = D // H
        q = (lambda x, *d: x.permute(*d))((x @ wq).reshape(B, S, H, Dh), 0, 2, 1, 3)
        k = x @ wk
        v = x @ wv
        scores = torch.einsum("bhqd,bkd->bhqk", q, k) * (Dh ** -0.5)
        p = _softmax(scores, axis=-1)
        o = torch.einsum("bhqk,bkd->bhqd", p, v)
        return (lambda x, *d: x.permute(*d))(o, 0, 2, 1, 3).reshape(B, S, H * Dh) @ wo

    def _B_ref(x, wqkv, wo):
        B, S, D = x.shape
        H = 32
        Dh = D // H
        qkv = (lambda x, *d: x.permute(*d))((x @ wqkv).reshape(B, S, 3, H, Dh), 2, 0, 3, 1, 4)
        q, k, v = qkv[0], qkv[1], qkv[2]
        scores = torch.einsum("bhqd,bhkd->bhqk", q, k) * (Dh ** -0.5)
        p = _softmax(scores, axis=-1)
        o = torch.einsum("bhqk,bhkd->bhqd", p, v)
        return (lambda x, *d: x.permute(*d))(o, 0, 2, 1, 3).reshape(B, S, D) @ wo

    a = _A_ref(A_x, A_wq, A_wk, A_wv, A_wo)
    b = _B_ref(B_x, B_wqkv, B_wo)
    return torch.concatenate([a, b], axis=-1)
```

```python
class Asm:
    def __init__(self):
        self.lines = []
    def __call__(self, s):
        for l in s.split("\n"):
            l = l.strip()
            if l.startswith("LABEL "):
                self.lines.append(l[6:] + ":")
            elif l:
                self.lines.append("  " + l)
    def label(self, l):
        self.lines.append(l + ":")
    def raw(self, s):
        self.lines.append(s)
    def text(self):
        return "\n".join(self.lines) + "\n"

def vr(a, n=1):
    return f"v{a}" if n == 1 else f"v[{a}:{a+n-1}]"
def sr(a, n=1):
    return f"s{a}" if n == 1 else f"s[{a}:{a+n-1}]"

KA_AX, KA_AWQ, KA_AWK, KA_AWV, KA_AWO, KA_BX, KA_BWQKV, KA_BWO, KA_OUT, KA_DBG, KA_WS = [8*i for i in range(11)]

KV_HEAD = 163840
KV_OFF  = 0
Q_HEAD  = 81920
Q_OFF   = 33 * KV_HEAD
O1_OFF  = Q_OFF + 64 * Q_HEAD
O1_HEAD = 65536
O2_OFF  = O1_OFF + 64 * O1_HEAD
O2_QUAD = 65536
WO_OFF  = O2_OFF + 16 * O2_QUAD
WS_END  = WO_OFF + 1600 * 1024

QSCALE = 1.4426950408889634 / (20.0 ** 0.5)

def kernel_header(a, name):
    a.raw(".text")
    a.raw(f".globl {name}")
    a.raw(".p2align 8")
    a.raw(f".type {name},@function")
    a.label(name)

def kernel_desc(name, nvgpr, accum, nsgpr=96):
    return f""".section .rodata,"a"
.p2align 6
.amdhsa_kernel {name}
  .amdhsa_next_free_vgpr {nvgpr}
  .amdhsa_next_free_sgpr {nsgpr}
  .amdhsa_accum_offset {accum}
  .amdhsa_group_segment_fixed_size 0
  .amdhsa_kernarg_size 88
  .amdhsa_user_sgpr_count 2
  .amdhsa_user_sgpr_kernarg_segment_ptr 1
  .amdhsa_system_sgpr_workgroup_id_x 1
  .amdhsa_float_denorm_mode_32 3
.end_amdhsa_kernel
"""

def srd(a, d, base, off, nbytes):
    if off == 0:
        a(f"s_mov_b32 s{d}, s{base}")
        a(f"s_and_b32 s{d+1}, s{base+1}, 0xffff")
    else:
        a(f"s_add_u32 s{d}, s{base}, {off}")
        a(f"s_addc_u32 s{d+1}, s{base+1}, 0")
        a(f"s_and_b32 s{d+1}, s{d+1}, 0xffff")
    a(f"s_mov_b32 s{d+2}, {nbytes}")
    a(f"s_mov_b32 s{d+3}, 0x20000")
```

```python
from common import *

SS = 39424
NCH = 10

def gen_k1(name="proj_kernel", opt=None):
    o = dict(stamp=False, pprio=3)
    if opt: o.update(opt)
    a = Asm()
    N = lambda s: f"L_{name}_{s}"
    S_X, S_W, S_E, S_OUT = 4, 8, 12, 16
    S_WAVE, S_TYPE, S_SB, S_U = 20, 21, 22, 23
    S_WS = 24
    S_WSTR = 26
    S_XO, S_WO, S_EO, S_M0, S_C = 27, 28, 29, 30, 31
    S_T = 32
    S_P = 48
    S_ST = 60
    t = S_T
    kernel_header(a, name)
    a("s_cmp_ge_u32 s2, 256")
    a(f"s_cbranch_scc1 {N('end')}")
    a(f"s_load_dwordx2 s[{S_P}:{S_P+1}], s[0:1], {KA_AX}")
    a(f"s_load_dwordx2 s[{S_P+2}:{S_P+3}], s[0:1], {KA_AWQ}")
    a(f"s_load_dwordx4 s[{S_P+4}:{S_P+7}], s[0:1], {KA_AWK}")
    a(f"s_load_dwordx4 s[{S_P+8}:{S_P+11}], s[0:1], {KA_BX}")
    a(f"s_load_dwordx2 s[{S_WS}:{S_WS+1}], s[0:1], {KA_WS}")
    if o["stamp"]:
        a(f"s_memtime s[{S_ST}:{S_ST+1}]")
        a(f"s_memrealtime s[{S_ST+2}:{S_ST+3}]")
    a("v_lshrrev_b32 v1, 6, v0")
    a("v_and_b32 v0, 63, v0")
    a(f"v_readfirstlane_b32 s{S_WAVE}, v1")
    a(f"s_and_b32 s{t}, s2, 7")
    a(f"s_lshr_b32 s{t+1}, s2, 3")
    a(f"s_lshr_b32 s{S_TYPE}, s{t}, 1")
    a(f"s_and_b32 s{t+2}, s{t}, 1")
    a(f"s_lshl_b32 s{t+2}, s{t+2}, 3")
    a(f"s_lshr_b32 s{t+3}, s{t+1}, 2")
    a(f"s_add_u32 s{S_SB}, s{t+2}, s{t+3}")
    a(f"s_and_b32 s{S_U}, s{t+1}, 3")
    a(f"s_cmp_eq_u32 s{S_TYPE}, 0")
    a(f"s_movk_i32 s{S_WSTR}, 3840")
    a(f"s_cselect_b32 s{S_WSTR}, 1280, s{S_WSTR}")
    a(f"s_cmp_ge_u32 s{S_WAVE}, 4")
    a(f"s_cbranch_scc0 {N('cons')}")

    if o.get("pprio"): a(f"s_setprio {o['pprio']}")
    w = S_T + 9
    a(f"s_sub_u32 s{w}, s{S_WAVE}, 4")
    a("v_lshrrev_b32 v4, 3, v0")
    a("v_and_b32 v5, 7, v0")
    a("v_lshrrev_b32 v6, 4, v0")
    a("v_mul_u32_u24 v4, 1280, v4")
    a("v_xor_b32 v7, v5, v6")
    a("v_lshl_add_u32 v2, v7, 4, v4")
    a("v_xor_b32 v7, 4, v7")
    a("v_lshl_add_u32 v3, v7, 4, v4")
    for j in range(5):
        a(f"v_add_u32 v4, {64*j}, v0")
        a("v_mul_u32_u24 v5, 3277, v4")
        a("v_lshrrev_b32 v5, 16, v5")
        a("v_mul_u32_u24 v6, 20, v5")
        a("v_sub_u32 v6, v4, v6")
        a("v_lshrrev_b32 v7, 3, v5")
        a("v_lshlrev_b32 v7, 1, v7")
        a("v_sub_u32 v6, v6, v7")
        a("v_add_u32 v7, 20, v6")
        a("v_cmp_gt_i32 vcc, 0, v6")
        a(f"v_mul_lo_u32 v5, v5, s{S_WSTR}")
        a("s_nop 0")
        a("v_cndmask_b32 v6, v6, v7, vcc")
        a(f"v_lshl_add_u32 v{8+j}, v6, 4, v5")
    a(f"s_lshl_b32 s{S_XO}, s{S_SB}, 7")
    a(f"s_lshl_b32 s{t}, s{w}, 5")
    a(f"s_add_u32 s{S_XO}, s{S_XO}, s{t}")
    a(f"s_mul_i32 s{S_XO}, s{S_XO}, 1280")
    a(f"s_max_u32 s{t}, s{S_TYPE}, 1")
    a(f"s_sub_u32 s{t}, s{t}, 1")
    a(f"s_mul_i32 s{t}, s{t}, 1280")
    a(f"s_mul_i32 s{t+1}, s{S_U}, 320")
    a(f"s_add_u32 s{t}, s{t}, s{t+1}")
    a(f"s_lshl_b32 s{t+1}, s{w}, 4")
    a(f"s_mul_i32 s{t+1}, s{t+1}, s{S_WSTR}")
    a(f"s_add_u32 s{S_WO}, s{t}, s{t+1}")
    S_WSTEP = S_T + 10
    a(f"s_lshl_b32 s{S_WSTEP}, s{S_WSTR}, 6")
    S_LX, S_LW, S_LE = S_T+11, S_T+12, S_T+13
    a(f"s_lshl_b32 s{S_LX}, s{w}, 12")
    a(f"s_mul_i32 s{S_LW}, s{w}, 5120")
    a(f"s_add_u32 s{S_LW}, s{S_LW}, 16384")
    a(f"s_mul_i32 s{S_LE}, s{w}, 640")
    a(f"s_add_u32 s{S_LE}, s{S_LE}, 36864")
    a(f"s_mov_b32 s{S_M0}, 0")
    S_TM = S_T+14
    a("v_lshlrev_b32 v13, 4, v0")
    a(f"s_mul_i32 s{S_EO}, s{w}, 640")
    a("s_waitcnt lgkmcnt(0)")
    a(f"s_cmp_eq_u32 s{S_TYPE}, 0")
    a(f"s_cselect_b32 s{S_X}, s{S_P}, s{S_P+8}")
    a(f"s_cselect_b32 s{S_X+1}, s{S_P+1}, s{S_P+9}")
    a(f"s_cselect_b32 s{S_W}, s{S_P+2}, s{S_P+10}")
    a(f"s_cselect_b32 s{S_W+1}, s{S_P+3}, s{S_P+11}")
    a(f"s_and_b32 s{S_X+1}, s{S_X+1}, 0xffff")
    a(f"s_mov_b32 s{S_X+2}, {2048*1280}")
    a(f"s_mov_b32 s{S_X+3}, 0x20000")
    a(f"s_and_b32 s{S_W+1}, s{S_W+1}, 0xffff")
    a(f"s_mul_i32 s{S_W+2}, s{S_WSTR}, 640")
    a(f"s_mov_b32 s{S_W+3}, 0x20000")

    def issue(extra, mid=None):
        if o.get("nodma"):
            if mid: mid()
            return
        for j in range(4):
            a(f"s_add_u32 s{S_TM}, s{S_M0}, s{S_LX}")
            a(f"s_add_u32 m0, s{S_TM}, {1024*j}")
            a(f"s_add_u32 s{S_TM}, s{S_XO}, {8*1280*j}")
            a(f"buffer_load_dwordx4 v{2+(j&1)}, s[{S_X}:{S_X+3}], s{S_TM} offen lds")
        if mid: mid()
        for j in range(5):
            a(f"s_add_u32 s{S_TM}, s{S_M0}, s{S_LW}")
            a(f"s_add_u32 m0, s{S_TM}, {1024*j}")
            a("s_nop 0")
            a(f"buffer_load_dwordx4 v{8+j}, s[{S_W}:{S_W+3}], s{S_WO} offen lds")
        if extra:
            a(f"s_add_u32 m0, s{S_M0}, s{S_LE}")
            a("s_mov_b32 exec_hi, 0xff")
            a(f"buffer_load_dwordx4 v13, s[{S_E}:{S_E+3}], s{S_EO} offen lds")
            a("s_mov_b64 exec, -1")
            a(f"s_add_u32 s{S_EO}, s{S_EO}, 2560")
        a(f"s_add_u32 s{S_XO}, s{S_XO}, 128")
        a(f"s_add_u32 s{S_WO}, s{S_WO}, s{S_WSTEP}")
        a(f"s_add_u32 s{S_M0}, s{S_M0}, {SS}")
        a(f"s_cmp_eq_u32 s{S_M0}, {4*SS}")
        a(f"s_cselect_b32 s{S_M0}, 0, s{S_M0}")

    a(f"s_cmp_eq_u32 s{S_TYPE}, 0")
    a(f"s_cbranch_scc1 {N('prodA')}")
    D = 9
    issue(False); issue(False)
    a(f"s_waitcnt vmcnt({D})")
    a("s_barrier")
    issue(False)
    a(f"s_mov_b32 s{S_C}, 0")
    a.label(N("ploop"))
    def pst(j):
        if not o.get("bst"): return
        a("s_memtime s[72:73]"); a(f"s_mul_i32 s74, s{S_C}, 3"); a(f"s_add_u32 m0, s74, {j}"); a("s_waitcnt lgkmcnt(0)"); a("v_writelane_b32 v40, s72, m0")
    a(f"s_waitcnt vmcnt({D})")
    pst(0)
    a("s_barrier")
    pst(1)
    issue(False)
    pst(2)
    a(f"s_add_u32 s{S_C}, s{S_C}, 1")
    a(f"s_cmp_lt_u32 s{S_C}, 7")
    a(f"s_cbranch_scc1 {N('ploop')}")
    for n in (D, 0):
        a(f"s_waitcnt vmcnt({n})")
        a("s_barrier")
    if o.get("bst"):
        a(f"s_lshl_b32 s{t}, s2, 3")
        a(f"s_add_u32 s{t}, s{t}, s{S_WAVE}")
        a(f"s_lshl_b32 s{t}, s{t}, 8")
        a(f"s_add_u32 s{t}, s{t}, {WS_END + 65536}")
        srd(a, S_X, S_WS, f"s{t}", 256)
        a("v_lshlrev_b32 v4, 2, v0")
        a(f"v_subrev_u32 v40, s{S_ST}, v40")
        a(f"buffer_store_dword v40, v4, s[{S_X}:{S_X+3}], 0 offen")
    a("s_endpgm")

    a.label(N("prodA"))
    D = 10
    a(f"s_cmp_lt_u32 s{S_U}, 2")
    a(f"s_cselect_b32 s{S_E}, s{S_P+4}, s{S_P+6}")
    a(f"s_cselect_b32 s{S_E+1}, s{S_P+5}, s{S_P+7}")
    a(f"s_and_b32 s{S_E+1}, s{S_E+1}, 0xffff")
    a(f"s_mov_b32 s{S_E+2}, {640*40}")
    a(f"s_mov_b32 s{S_E+3}, 0x20000")
    issue(True); issue(True)
    EX = [16, 20]
    EW = 24
    EA = [28, 32]
    VEX = [14, 15]
    VEW = 36
    a("v_and_b32 v4, 15, v0")
    a("v_lshrrev_b32 v5, 4, v0")
    a("v_lshrrev_b32 v6, 1, v4")
    a("v_xor_b32 v6, v5, v6")
    a(f"s_lshl_b32 s{t}, s{w}, 5")
    a(f"v_add_u32 v7, s{t}, v4")
    a("v_lshlrev_b32 v7, 7, v7")
    a(f"v_lshl_add_u32 v{VEX[0]}, v6, 4, v7")
    a("v_xor_b32 v6, 4, v6")
    a(f"v_lshl_add_u32 v{VEX[1]}, v6, 4, v7")
    a("v_lshrrev_b32 v6, 2, v4")
    a("v_lshl_add_u32 v6, v5, 3, v6")
    a("v_mul_u32_u24 v6, 40, v6")
    a("v_and_b32 v7, 3, v0")
    a("v_lshl_add_u32 v6, v7, 3, v6")
    a(f"s_and_b32 s{t}, s{S_U}, 1")
    a(f"s_lshl_b32 s{t}, s{t}, 5")
    a(f"s_add_u32 s{t}, s{t}, 36864")
    a(f"v_add_u32 v{VEW}, s{t}, v6")
    for r in EA:
        for i in range(4): a(f"v_mov_b32 v{r+i}, 0")
    S_RB = S_T + 15
    a(f"s_mov_b32 s{S_RB}, 0")
    def extras(tag):
        extras_rd(); extras_mm(tag)
    def extras_rd():
        a(f"v_add_u32 v37, s{S_RB}, v{VEX[0]}")
        a(f"v_add_u32 v38, s{S_RB}, v{VEX[1]}")
        a(f"v_add_u32 v39, s{S_RB}, v{VEW}")
        for ks in range(2):
            for i in range(2):
                a(f"ds_read_b128 {vr(EX[i]+24*ks,4)}, v{37+ks} offset:{2048*i}")
            for h in range(2):
                a(f"ds_read_b64_tr_b16 {vr(EW+24*ks+2*h,2)}, v39 offset:{ks*32*40 + h*4*40}")
    def extras_mm(tag):
        a("s_waitcnt lgkmcnt(0)")
        a(f"s_cmp_lt_u32 s{S_U}, 2")
        a(f"s_cbranch_scc0 {N('exv'+tag)}")
        for ks in range(2):
            for i in range(2):
                a(f"v_mfma_f32_16x16x32_bf16 {vr(EA[i],4)}, {vr(EW+24*ks,4)}, {vr(EX[i]+24*ks,4)}, {vr(EA[i],4)}")
        a(f"s_branch {N('exd'+tag)}")
        a.label(N("exv"+tag))
        for ks in range(2):
            for i in range(2):
                a(f"v_mfma_f32_16x16x32_bf16 {vr(EA[i],4)}, {vr(EX[i]+24*ks,4)}, {vr(EW+24*ks,4)}, {vr(EA[i],4)}")
        a.label(N("exd"+tag))
        a(f"s_add_u32 s{S_RB}, s{S_RB}, {SS}")
        a(f"s_cmp_eq_u32 s{S_RB}, {4*SS}")
        a(f"s_cselect_b32 s{S_RB}, 0, s{S_RB}")
    a(f"s_waitcnt vmcnt({D})")
    a("s_barrier")
    extras_rd()
    issue(True, lambda: extras_mm("p"))
    a(f"s_mov_b32 s{S_C}, 0")
    a.label(N("aloop"))
    a(f"s_waitcnt vmcnt({D})")
    a("s_barrier")
    extras_rd()
    issue(True, lambda: extras_mm("l"))
    a(f"s_add_u32 s{S_C}, s{S_C}, 1")
    a(f"s_cmp_lt_u32 s{S_C}, 7")
    a(f"s_cbranch_scc1 {N('aloop')}")
    for c, n in ((7, D), (8, 0)):
        a(f"s_waitcnt vmcnt({n})")
        a("s_barrier")
        extras(str(c))
    a("s_nop 7")
    for i in range(2):
        a(f"v_cvt_pk_bf16_f32 v{40+2*i}, v{EA[i]}, v{EA[i]+1}")
        a(f"v_cvt_pk_bf16_f32 v{41+2*i}, v{EA[i]+2}, v{EA[i]+3}")
    a(f"s_lshl_b32 s{t}, s{S_SB}, 1")
    a(f"s_lshr_b32 s{t+1}, s{w}, 1")
    a(f"s_add_u32 s{t}, s{t}, s{t+1}")
    a(f"s_mul_i32 s{t}, s{t}, 5120")
    a(f"s_add_u32 s{t}, s{t}, {KV_OFF}")
    srd(a, S_OUT, S_WS, f"s{t}", 5120)
    a(f"s_and_b32 s{t+1}, s{w}, 1")
    a("v_and_b32 v4, 15, v0")
    a("v_lshrrev_b32 v5, 4, v0")
    a("v_lshrrev_b32 v6, 1, v5")
    a("v_and_b32 v7, 1, v5")
    a(f"s_cmp_lt_u32 s{S_U}, 2")
    a(f"s_cbranch_scc0 {N('stv')}")
    a(f"s_cmp_eq_u32 s{S_U}, 0")
    a(f"s_cbranch_scc0 {N('stk2')}")
    a(f"s_lshl_b32 s{t+1}, s{t+1}, 10")
    a("v_lshlrev_b32 v6, 9, v6")
    a("v_lshl_add_u32 v6, v7, 3, v6")
    a("v_lshl_add_u32 v6, v4, 4, v6")
    a(f"v_add_u32 v6, s{t+1}, v6")
    a(f"buffer_store_dwordx2 v[40:41], v6, s[{S_OUT}:{S_OUT+3}], 0 offen")
    a(f"buffer_store_dwordx2 v[42:43], v6, s[{S_OUT}:{S_OUT+3}], 0 offen offset:256")
    a("s_endpgm")
    a.label(N("stk2"))
    a(f"s_lshl_b32 s{t+1}, s{t+1}, 8")
    a(f"s_add_u32 s{t+1}, s{t+1}, 2048")
    a("v_lshlrev_b32 v6, 3, v4")
    a(f"v_add_u32 v6, s{t+1}, v6")
    a("s_mov_b64 exec, 0xffff")
    a(f"buffer_store_dwordx2 v[40:41], v6, s[{S_OUT}:{S_OUT+3}], 0 offen")
    a(f"buffer_store_dwordx2 v[42:43], v6, s[{S_OUT}:{S_OUT+3}], 0 offen offset:128")
    a("s_endpgm")
    a.label(N("stv"))
    a(f"s_mul_i32 s{t+1}, s{t+1}, 1280")
    a(f"s_add_u32 s{t+1}, s{t+1}, 2560")
    a("v_mul_u32_u24 v6, 320, v6")
    a("v_lshl_add_u32 v6, v7, 3, v6")
    a("v_lshl_add_u32 v6, v4, 4, v6")
    a(f"s_and_b32 s{t+2}, s{S_U}, 1")
    a(f"s_lshl_b32 s{t+3}, s{t+2}, 8")
    a(f"s_add_u32 s{t+1}, s{t+1}, s{t+3}")
    a(f"v_add_u32 v6, s{t+1}, v6")
    a(f"s_cmp_eq_u32 s{t+2}, 0")
    a(f"s_cbranch_scc1 {N('stv2')}")
    a("s_mov_b32 exec_lo, 0x000f000f")
    a("s_mov_b32 exec_hi, 0x000f000f")
    a.label(N("stv2"))
    a(f"buffer_store_dwordx2 v[40:41], v6, s[{S_OUT}:{S_OUT+3}], 0 offen")
    a(f"buffer_store_dwordx2 v[42:43], v6, s[{S_OUT}:{S_OUT+3}], 0 offen offset:640")
    a("s_endpgm")

    a.label(N("cons"))
    ACC = lambda i, tt: 16 + 4*(5*i + tt)
    XF = lambda s, i: 96 + 16*s + 4*i
    WF = lambda s, tt: 128 + 20*s + 4*tt
    VX = [[168, 169], [170, 171]]
    VW = [[172+tt for tt in range(5)], [177+tt for tt in range(5)]]
    V_A1, V_A2 = 182, 183
    S_SI, S_NJ = S_T+9, S_T+10
    a(f"s_lshr_b32 s{S_SI}, s{S_WAVE}, 1")
    a(f"s_and_b32 s{S_NJ}, s{S_WAVE}, 1")
    a("v_and_b32 v4, 15, v0")
    a("v_lshrrev_b32 v5, 4, v0")
    a("v_lshrrev_b32 v6, 1, v4")
    a("v_xor_b32 v6, v5, v6")
    a(f"s_lshl_b32 s{t}, s{S_SI}, 6")
    a(f"v_add_u32 v7, s{t}, v4")
    a("v_lshlrev_b32 v7, 7, v7")
    a(f"v_lshl_add_u32 v{VX[0][0]}, v6, 4, v7")
    a("v_xor_b32 v6, 4, v6")
    a(f"v_lshl_add_u32 v{VX[0][1]}, v6, 4, v7")
    a(f"v_add_u32 v{VX[1][0]}, {2*SS}, v{VX[0][0]}")
    a(f"v_add_u32 v{VX[1][1]}, {2*SS}, v{VX[0][1]}")
    a("v_lshrrev_b32 v6, 2, v4")
    a("v_lshl_add_u32 v6, v5, 3, v6")
    a("v_mul_u32_u24 v6, 320, v6")
    a("v_add_u32 v6, 16384, v6")
    a("v_and_b32 v7, 3, v0")
    a("v_and_b32 v8, 1, v5")
    a("v_lshlrev_b32 v8, 5, v8")
    a(f"s_mul_i32 s{t}, s{S_NJ}, 160")
    a(f"v_add_u32 v8, s{t}, v8")
    a("v_lshl_add_u32 v9, v7, 3, v8")
    a("v_mul_u32_u24 v10, 40, v7")
    a("v_add3_u32 v10, v10, v8, 32")
    for tt in range(5):
        src = 9 if tt < 4 else 10
        if tt and tt < 4: a(f"v_add_u32 v11, {40*tt}, v9")
        else: a(f"v_mov_b32 v11, v{src}")
        a("v_cmp_le_u32 vcc, 320, v11")
        a("v_subrev_u32 v12, 320, v11")
        a("s_nop 0")
        a("v_cndmask_b32 v11, v11, v12, vcc")
        a(f"v_add_u32 v{VW[0][tt]}, v11, v6")
        a(f"v_add_u32 v{VW[1][tt]}, {2*SS}, v{VW[0][tt]}")
    S_HS, S_SO = S_T+11, S_T+12
    a(f"s_cmp_le_u32 s{S_TYPE}, 1")
    a(f"s_mov_b32 s{S_HS}, {KV_HEAD}")
    a(f"s_cselect_b32 s{S_HS}, {Q_HEAD}, s{S_HS}")
    a(f"s_lshl_b32 s{S_SO}, s{S_NJ}, 2")
    a(f"s_mul_i32 s{S_SO}, s{S_SO}, s{S_HS}")
    a(f"s_cmp_eq_u32 s{S_TYPE}, 3")
    a(f"s_cbranch_scc1 {N('adV')}")
    a(f"v_lshlrev_b32 v{V_A1}, 4, v0")
    a(f"v_mul_lo_u32 v6, v5, s{S_HS}")
    a(f"v_lshl_add_u32 v{V_A2}, v4, 3, v6")
    a(f"s_branch {N('adD')}")
    a.label(N("adV"))
    a("v_and_b32 v6, 1, v5")
    a("v_mul_u32_u24 v6, 640, v6")
    a("v_lshrrev_b32 v7, 1, v5")
    a("v_mul_u32_u24 v7, 320, v7")
    a("v_add_u32 v6, v6, v7")
    a(f"v_lshl_add_u32 v{V_A1}, v4, 4, v6")
    a("v_and_b32 v7, 3, v4")
    a("v_add_u32 v7, 16, v7")
    a("v_lshl_add_u32 v6, v7, 4, v6")
    a("v_lshrrev_b32 v7, 2, v4")
    a(f"v_mul_lo_u32 v7, v7, s{S_HS}")
    a(f"v_add_u32 v{V_A2}, v6, v7")
    a.label(N("adD"))
    a("s_waitcnt lgkmcnt(0)")
    a(f"s_cmp_le_u32 s{S_TYPE}, 1")
    a(f"s_cbranch_scc0 {N('osK')}")
    a(f"s_lshl_b32 s{t}, s{S_TYPE}, 5")
    a(f"s_lshl_b32 s{t+1}, s{S_U}, 3")
    a(f"s_add_u32 s{t}, s{t}, s{t+1}")
    a(f"s_mul_i32 s{t}, s{t}, {Q_HEAD}")
    a(f"s_lshl_b32 s{t+1}, s{S_SB}, 2")
    a(f"s_lshl_b32 s{t+2}, s{S_SI}, 1")
    a(f"s_add_u32 s{t+1}, s{t+1}, s{t+2}")
    a(f"s_mul_i32 s{t+1}, s{t+1}, 1280")
    a(f"s_add_u32 s{t}, s{t}, s{t+1}")
    a(f"s_add_u32 s{t}, s{t}, {Q_OFF}")
    a(f"s_branch {N('osD')}")
    a.label(N("osK"))
    a(f"s_lshl_b32 s{t}, s{S_U}, 3")
    a(f"s_add_u32 s{t}, s{t}, 1")
    a(f"s_mul_i32 s{t}, s{t}, {KV_HEAD}")
    a(f"s_lshl_b32 s{t+1}, s{S_SB}, 1")
    a(f"s_add_u32 s{t+1}, s{t+1}, s{S_SI}")
    a(f"s_mul_i32 s{t+1}, s{t+1}, 5120")
    a(f"s_add_u32 s{t}, s{t}, s{t+1}")
    a(f"s_cmp_eq_u32 s{S_TYPE}, 3")
    a(f"s_cselect_b32 s{t+1}, 2560, 0")
    a(f"s_add_u32 s{t}, s{t}, s{t+1}")
    a(f"s_add_u32 s{t}, s{t}, {KV_OFF}")
    a.label(N("osD"))
    srd(a, S_OUT, S_WS, f"s{t}", 8*KV_HEAD)

    def reads(c, ks, s):
        st = c % 4; hf = st >> 1; so = (st & 1) * SS
        r = []
        xr = [f"ds_read_b128 {vr(XF(s,i),4)}, v{VX[hf][ks]} offset:{so + 2048*i}" for i in range(4)]
        wr = []
        for tt in range(5):
            for h in range(2):
                wr.append(f"ds_read_b64_tr_b16 {vr(WF(s,tt)+2*h,2)}, v{VW[hf][tt]} offset:{so + ks*10240 + h*1280}")
        return [xr[0], wr[0], wr[1], xr[1], wr[2], wr[3], xr[2], wr[4], wr[5], xr[3], wr[6], wr[7], wr[8], wr[9]]
    def kstep(s, swap, rd, first=False):
        order = [(i, tt) for tt in range(5) for i in range(4)]
        if o.get("nomfma"):
            if not o.get("noread"):
                for x in rd: a(x)
            return
        if o.get("noread"): rd = []
        for n, (i, tt) in enumerate(order):
            C = "0" if first else vr(ACC(i,tt),4)
            if swap: a(f"v_mfma_f32_16x16x32_bf16 {vr(ACC(i,tt),4)}, {vr(XF(s,i),4)}, {vr(WF(s,tt),4)}, {C}")
            else:    a(f"v_mfma_f32_16x16x32_bf16 {vr(ACC(i,tt),4)}, {vr(WF(s,tt),4)}, {vr(XF(s,i),4)}, {C}")
            if n < len(rd): a(rd[n])
    def mainloop(swap):
        for c in range(NCH):
            a("s_waitcnt lgkmcnt(0)")
            kstep(0, swap, reads(c, 1, 1), first=(c == 0))
            a("s_waitcnt lgkmcnt(0)")
            if o.get("bst"):
                a("s_memtime s[72:73]"); a("s_waitcnt lgkmcnt(0)"); a(f"v_writelane_b32 v190, s72, {2*c}")
            if c < NCH-1: a("s_barrier")
            if o.get("bst"):
                a("s_memtime s[72:73]"); a("s_waitcnt lgkmcnt(0)"); a(f"v_writelane_b32 v190, s72, {2*c+1}")
            kstep(1, swap, reads(c+1, 0, 0) if c < NCH-1 else [])
        a("s_nop 7")
    a("s_barrier")
    if o["stamp"]: a("s_memtime s[64:65]")
    for x in reads(0, 0, 0): a(x)
    a(f"s_cmp_eq_u32 s{S_TYPE}, 3")
    a(f"s_cbranch_scc1 {N('consV')}")
    mainloop(False)
    if o["stamp"]: a("s_memtime s[66:67]")
    def pack_swap(m, tt):
        X, Y = ACC(2*m, tt), ACC(2*m+1, tt)
        a(f"v_cvt_pk_bf16_f32 v{X}, v{X}, v{X+1}")
        a(f"v_cvt_pk_bf16_f32 v{X+1}, v{X+2}, v{X+3}")
        a(f"v_cvt_pk_bf16_f32 v{X+2}, v{Y}, v{Y+1}")
        a(f"v_cvt_pk_bf16_f32 v{X+3}, v{Y+2}, v{Y+3}")
    def swaps(m, tt):
        X = ACC(2*m, tt)
        a(f"v_permlane16_swap_b32 v{X}, v{X+2}")
        a(f"v_permlane16_swap_b32 v{X+1}, v{X+3}")
    def epi_qk(isq):
        if isq:
            a(f"s_mov_b32 s{t}, {hex(__import__('struct').unpack('<I', __import__('struct').pack('<f', QSCALE))[0])}")
            a(f"v_mov_b32 v8, s{t}")
        step1 = 1280 if isq else 1024
        for tt in range(4):
            if isq:
                for m in range(2):
                    for r in (ACC(2*m,tt), ACC(2*m,tt)+2, ACC(2*m+1,tt), ACC(2*m+1,tt)+2):
                        a(f"v_pk_mul_f32 {vr(r,2)}, {vr(r,2)}, v[8:9] op_sel_hi:[1,0]")
            for m in range(2): pack_swap(m, tt)
            a(f"s_mul_i32 s{t+1}, s{S_HS}, {tt}")
            a(f"s_add_u32 s{t+1}, s{t+1}, s{S_SO}")
            for m in range(2):
                swaps(m, tt)
                a(f"buffer_store_dwordx4 {vr(ACC(2*m,tt),4)}, v{V_A1}, s[{S_OUT}:{S_OUT+3}], s{t+1} offen offset:{step1*m}")
        for i in range(4):
            r = ACC(i, 4)
            if isq:
                a(f"v_pk_mul_f32 {vr(r,2)}, {vr(r,2)}, v[8:9] op_sel_hi:[1,0]")
                a(f"v_pk_mul_f32 {vr(r+2,2)}, {vr(r+2,2)}, v[8:9] op_sel_hi:[1,0]")
            a(f"v_cvt_pk_bf16_f32 v{r}, v{r}, v{r+1}")
            a(f"v_cvt_pk_bf16_f32 v{r+1}, v{r+2}, v{r+3}")
            off = (1024 + (i>>1)*1280 + (i&1)*128) if isq else (2048 + (i>>1)*256 + (i&1)*128)
            a(f"buffer_store_dwordx2 {vr(r,2)}, v{V_A2}, s[{S_OUT}:{S_OUT+3}], s{S_SO} offen offset:{off}")
    a(f"s_cmp_eq_u32 s{S_TYPE}, 2")
    a(f"s_cbranch_scc1 {N('epiK')}")
    epi_qk(True)
    a(f"s_branch {N('fin')}")
    a.label(N("epiK"))
    epi_qk(False)
    a.label(N("fin"))
    def stamp_out():
        if not o["stamp"]: return
        a("s_memtime s[68:69]")
        a("s_memrealtime s[70:71]")
        a("s_waitcnt lgkmcnt(0)")
        a(f"s_lshl_b32 s{t}, s2, 2")
        a(f"s_add_u32 s{t}, s{t}, s{S_WAVE}")
        a(f"s_lshl_b32 s{t}, s{t}, 5")
        a(f"s_add_u32 s{t}, s{t}, {WS_END}")
        srd(a, S_X, S_WS, f"s{t}", 32)
        for i, (x, y) in enumerate([(68, S_ST), (70, S_ST+2), (64, S_ST), (66, S_ST)]):
            a(f"s_sub_u32 s{x}, s{x}, s{y}")
            a(f"v_mov_b32 v{4+i}, s{x}")
        a(f"v_mov_b32 v8, s{S_ST+2}")
        a("v_mov_b32 v9, 0")
        a("s_mov_b64 exec, 1")
        for i in range(5): a(f"buffer_store_dword v{4+i}, v9, s[{S_X}:{S_X+3}], 0 offen offset:{4*i}")
        if o.get("bst"):
            a("s_mov_b64 exec, -1")
            a(f"s_lshl_b32 s{t}, s2, 3")
            a(f"s_add_u32 s{t}, s{t}, s{S_WAVE}")
            a(f"s_lshl_b32 s{t}, s{t}, 8")
            a(f"s_add_u32 s{t}, s{t}, {WS_END + 65536}")
            srd(a, S_X, S_WS, f"s{t}", 256)
            a("v_lshlrev_b32 v4, 2, v0")
            a(f"v_subrev_u32 v190, s{S_ST}, v190")
            a(f"buffer_store_dword v190, v4, s[{S_X}:{S_X+3}], 0 offen")
    stamp_out()
    a("s_endpgm")
    a.label(N("consV"))
    mainloop(True)
    if o["stamp"]: a("s_memtime s[66:67]")
    for tt in range(5):
        for m in range(2): pack_swap(m, tt)
        if tt < 4:
            a(f"s_mul_i32 s{t+1}, s{S_HS}, {tt}")
            a(f"s_add_u32 s{t+1}, s{t+1}, s{S_SO}")
        else:
            a(f"s_mov_b32 s{t+1}, s{S_SO}")
            a("s_nop 0")
        for m in range(2):
            swaps(m, tt)
            a(f"buffer_store_dwordx4 {vr(ACC(2*m,tt),4)}, v{V_A1 if tt < 4 else V_A2}, s[{S_OUT}:{S_OUT+3}], s{t+1} offen offset:{1280*m}")
    stamp_out()
    a("s_endpgm")
    a.label(N("end"))
    a("s_endpgm")
    return a.text(), kernel_desc(name, 192, 192)

if __name__ == "__main__":
    b, d = gen_k1(); print(b); print(d)
```

```python
from common import *

def gen_k2(name="attn_kernel", opt=None):
    o = dict(stamp=False, p_hi=3, p_mid=1, mid_at=8, P=4, bars={1: (7, 8), 5: (20, 20)}, align=1, NA=4, dma_at="QKc", woprep=1)
    if opt: o.update(opt)
    a = Asm()
    NQ = 2
    V_L16, V_KA, V_KB, V_VA, V_IDX = 0, 1, 2, 3, 4
    V_T = 5
    S = [16, 48]
    O = [80, 96]
    M = [112, 128]
    Q1 = [144, 148]
    Q2 = [152, 154]
    K1 = [[156, 160], [166, 170]]
    K2 = [164, 174]
    V = [176, 192]
    B_KB, B_VA = 208, 209
    NV = 220
    S_KV, S_Q, S_O1, S_O2 = 4, 8, 12, 16
    S_WS = 20
    S_WAVE, S_IT, S_CUR, S_PIECE, S_BARM, S_DMAN, S_PASS = 22, 23, 24, 25, 26, 27, 28
    S_VM = 30
    S_T = 32
    S_WP = 84
    S_ST = 50
    N = lambda s: f"L_{name}_{s}"

    kernel_header(a, name)
    a(f"s_cmp_ge_u32 s2, 256")
    a(f"s_cbranch_scc1 {N('end')}")
    a(f"s_load_dwordx2 s[{S_WS}:{S_WS+1}], s[0:1], {KA_WS}")
    if o["woprep"]:
        a(f"s_load_dwordx2 s[{S_WP}:{S_WP+1}], s[0:1], {KA_AWO}")
        a(f"s_load_dwordx2 s[{S_WP+2}:{S_WP+3}], s[0:1], {KA_BWO}")
    if o["stamp"]:
        a(f"s_memtime s[{S_ST}:{S_ST+1}]")
        a(f"s_memrealtime s[{S_ST+2}:{S_ST+3}]")
    a(f"v_lshrrev_b32 v{V_T}, 6, v0")
    a(f"v_and_b32 v{V_T+1}, 63, v0")
    a(f"v_readfirstlane_b32 s{S_WAVE}, v{V_T}")
    t = S_T
    a(f"s_and_b32 s{t}, s2, 7")
    a(f"s_lshr_b32 s{t+1}, s2, 3")
    a(f"s_and_b32 s{t+2}, s{t+1}, 3")
    a(f"s_lshr_b32 s{t+3}, s{t+1}, 2")
    a(f"s_and_b32 s{t+4}, s{t+3}, 1")
    a(f"s_lshr_b32 s{t+5}, s{t+3}, 1")
    a(f"s_lshl_b32 s{t+6}, s{t}, 2")
    a(f"s_add_u32 s{t+6}, s{t+6}, s{t+5}")
    a(f"s_add_u32 s{t+7}, s{t+6}, 1")
    a(f"s_mul_i32 s{t+7}, s{t+7}, s{t+4}")
    a(f"s_mul_i32 s{t+7}, s{t+7}, {KV_HEAD}")
    a(f"s_lshl_b32 s{t+8}, s{t+4}, 5")
    a(f"s_add_u32 s{t+8}, s{t+8}, s{t+6}")
    a(f"s_lshl_b32 s{t+9}, s{t+2}, 3")
    a(f"s_add_u32 s{t+9}, s{t+9}, s{S_WAVE}")
    a(f"s_mul_i32 s{t+10}, s{t+8}, {Q_HEAD}")
    a(f"s_mul_i32 s{t+11}, s{t+9}, 2560")
    a(f"s_add_u32 s{t+10}, s{t+10}, s{t+11}")
    a(f"s_add_u32 s{t+10}, s{t+10}, {Q_OFF}")
    a(f"s_lshl_b32 s{t+11}, s{t+8}, 16")
    a(f"s_lshl_b32 s{t+12}, s{t+9}, 11")
    a(f"s_add_u32 s{t+11}, s{t+11}, s{t+12}")
    a(f"s_add_u32 s{t+11}, s{t+11}, {O1_OFF}")
    a(f"s_lshl_b32 s{t+13}, s{t+4}, 3")
    a(f"s_add_u32 s{t+13}, s{t+13}, s{t}")
    a(f"s_lshl_b32 s{t+13}, s{t+13}, 16")
    a(f"s_add_u32 s{t+13}, s{t+13}, s{t+12}")
    a(f"s_lshl_b32 s{t+14}, s{t+5}, 3")
    a(f"s_add_u32 s{t+13}, s{t+13}, s{t+14}")
    a(f"s_add_u32 s{t+13}, s{t+13}, {O2_OFF}")
    L = V_T+1
    a(f"v_lshlrev_b32 v{V_L16}, 4, v{L}")
    a(f"v_and_b32 v{V_T+2}, 31, v{L}")
    a(f"v_lshrrev_b32 v{V_T+3}, 5, v{L}")
    a(f"v_lshlrev_b32 v{V_T+4}, 3, v{V_T+2}")
    a(f"s_lshl_b32 s{S_PIECE}, s{S_WAVE}, 10")
    a(f"s_waitcnt lgkmcnt(0)")
    srd(a, S_KV, S_WS, f"s{t+7}", KV_HEAD)
    srd(a, S_Q, S_WS, f"s{t+10}", 2560)
    def dma():
        a(f"s_mov_b32 m0, s{S_PIECE}")
        a(f"s_nop 0")
        a(f"buffer_load_dwordx4 v{V_L16}, s[{S_KV}:{S_KV+3}], s{S_PIECE} offen lds")
        a(f"s_add_u32 s{S_PIECE}, s{S_PIECE}, 8192")
    dma()
    for b in range(NQ):
        a(f"buffer_load_dwordx4 {vr(Q1[b],4)}, v{V_L16}, s[{S_Q}:{S_Q+3}], 0 offen offset:{1280*b}")
        a(f"buffer_load_dwordx2 {vr(Q2[b],2)}, v{V_T+4}, s[{S_Q}:{S_Q+3}], 0 offen offset:{1280*b+1024}")
    for n in range(o["P"]-1): dma()
    srd(a, S_O1, S_WS, f"s{t+11}", 2048)
    srd(a, S_O2, S_WS, f"s{t+13}", 2048)
    if o["woprep"]:
        WF = 212
        u = 68
        a(f"s_lshl_b32 s{u}, s2, 3")
        a(f"s_add_u32 s{u}, s{u}, s{S_WAVE}")
        a(f"s_cmp_lt_u32 s{u}, 1600")
        a(f"s_cselect_b32 s80, 1, 0")
        a(f"s_cbranch_scc0 {N('nowo')}")
        a(f"s_cmp_ge_u32 s{u}, 800")
        a(f"s_cselect_b32 s{u+1}, 800, 0")
        a(f"s_cselect_b32 s{u+8}, s{S_WP+2}, s{S_WP}")
        a(f"s_cselect_b32 s{u+9}, s{S_WP+3}, s{S_WP+1}")
        a(f"s_sub_u32 s{u+1}, s{u}, s{u+1}")
        a(f"s_mul_hi_u32 s{u+2}, s{u+1}, {(2**32 + 4)//5}")
        a(f"s_mul_i32 s{u+3}, s{u+2}, 5")
        a(f"s_sub_u32 s{u+3}, s{u+1}, s{u+3}")
        a(f"s_mul_hi_u32 s{u+4}, s{u+2}, {(2**32 + 19)//20}")
        a(f"s_mul_i32 s{u+5}, s{u+4}, 20")
        a(f"s_sub_u32 s{u+5}, s{u+2}, s{u+5}")
        a(f"s_and_b32 s{u+9}, s{u+9}, 0xffff")
        a(f"s_mov_b32 s{u+10}, {640*1280}")
        a(f"s_mov_b32 s{u+11}, 0x20000")
        a(f"s_mul_i32 s{u+4}, s{u+4}, 160")
        a(f"s_lshl_b32 s{u+3}, s{u+3}, 5")
        a(f"s_add_u32 s{u+4}, s{u+4}, s{u+3}")
        a(f"v_and_b32 v{V_T+6}, 15, v{L}")
        a(f"v_lshrrev_b32 v{V_T+7}, 4, v{L}")
        a(f"v_lshrrev_b32 v{V_T+8}, 1, v{V_T+7}")
        a(f"v_and_b32 v{V_T+7}, 1, v{V_T+7}")
        a(f"v_lshlrev_b32 v{V_T+6}, 1, v{V_T+6}")
        a(f"v_add_u32 v{V_T+6}, s{u+4}, v{V_T+6}")
        a(f"s_lshl_b32 s{u+6}, s{u+5}, 1")
        a(f"s_cmp_lt_u32 s{u+5}, 16")
        a(f"s_cbranch_scc0 {N('woq')}")
        a(f"v_add_u32 v{V_T+8}, s{u+6}, v{V_T+8}")
        a(f"v_mul_u32_u24 v{V_T+8}, 20, v{V_T+8}")
        a(f"v_lshl_add_u32 v{V_T+8}, v{V_T+7}, 3, v{V_T+8}")
        a(f"s_movk_i32 s{u+7}, {4*1280}")
        a(f"s_branch {N('wol')}")
        a.label(N("woq"))
        a(f"s_sub_u32 s{u+6}, s{u+6}, 32")
        a(f"v_add_u32 v{V_T+8}, s{u+6}, v{V_T+8}")
        a(f"v_mul_u32_u24 v{V_T+8}, 80, v{V_T+8}")
        a(f"v_mul_u32_u24 v{V_T+7}, 40, v{V_T+7}")
        a(f"v_add3_u32 v{V_T+8}, v{V_T+8}, v{V_T+7}, 16")
        a(f"s_movk_i32 s{u+7}, {20*1280}")
        a.label(N("wol"))
        a(f"v_mul_u32_u24 v{V_T+8}, 1280, v{V_T+8}")
        a(f"v_add_u32 v{V_T+6}, v{V_T+6}, v{V_T+8}")
        for j in range(8):
            so = f"s{u+7}" if j >= 4 else "0"
            a(f"buffer_load_ushort v{WF + (j>>1) + 4*(j&1)}, v{V_T+6}, s[{u+8}:{u+11}], {so} offen offset:{1280*(j&3)}")
        a.label(N("nowo"))
    a(f"v_lshlrev_b32 v{B_KB}, 3, v{L}")
    a(f"v_add_u32 v{B_KB}, 2048, v{B_KB}")
    a(f"v_mul_u32_u24 v{B_VA}, 320, v{V_T+3}")
    a(f"v_lshl_add_u32 v{B_VA}, v{V_T+2}, 4, v{B_VA}")
    a(f"v_add_u32 v{B_VA}, 2560, v{B_VA}")
    a(f"s_mov_b32 s{S_VM}, 0x000fffff")
    a(f"s_mov_b32 s{S_VM+1}, 0x000fffff")
    a(f"v_mov_b32 v{V_IDX}, 0xdddddddd")
    a(f"v_cmp_eq_u32 vcc, 20, v{V_T+2}")
    a(f"v_mov_b32 v{V_T+5}, 0x3f803f80")
    a(f"s_nop 0")
    a(f"v_cndmask_b32 v{V_T+5}, 0, v{V_T+5}, vcc")
    for i in range(32): a(f"v_mov_b32 v{V[0]+i}, v{V_T+5}")
    for b in range(NQ):
        for i in range(16): a(f"v_mov_b32 v{M[b]+i}, 0")
    mask = sum(1 << i for i in o["bars"])
    if o["align"]:
        a(f"s_cmp_lt_u32 s{S_WAVE}, 4")
        a(f"s_cselect_b32 s{S_BARM}, {mask}, 0")
        a(f"s_cselect_b32 s{S_DMAN}, 0, {mask}")
    else:
        a(f"s_mov_b32 s{S_BARM}, {mask}")
        a(f"s_mov_b32 s{S_DMAN}, 0")
    a(f"s_mov_b32 s{S_PASS}, 0")

    def rd_K(buf, off):
        if o.get("nolds"): return []
        return [f"ds_read_b128 {vr(K1[buf][0],4)}, v{V_KA} offset:{off}",
                f"ds_read_b128 {vr(K1[buf][1],4)}, v{V_KA} offset:{off+1024}",
                f"ds_read_b64 {vr(K2[buf],2)}, v{V_KB} offset:{off}"]
    def rd_V(buf, off):
        if o.get("nolds"): return []
        r = [f"s_mov_b64 exec, s[{S_VM}:{S_VM+1}]"]
        for f in range(4):
            r.append(f"ds_read_b128 {vr(V[buf]+4*f,4)}, v{V_VA} offset:{off+640*f}")
        r.append("s_mov_b64 exec, -1")
        return r
    def QKa(sb, b, kb):
        if o.get("noqk"): return "s_nop 0"
        return f"v_mfma_f32_32x32x16_bf16 {vr(S[sb],16)}, {vr(K1[kb][0],4)}, {vr(Q1[b],4)}, {vr(M[b],16)}"
    def QKb(sb, b, kb):
        if o.get("noqk"): return "s_nop 0"
        return f"v_mfma_f32_32x32x16_bf16 {vr(S[sb]+16,16)}, {vr(K1[kb][1],4)}, {vr(Q1[b],4)}, {vr(M[b],16)}"
    def QKc(sb, b, kb):
        if o.get("noqk") or o.get("noqkc"): return "s_nop 0"
        return f"v_mfma_f32_32x32x4_2b_bf16 {vr(S[sb],32)}, {vr(K2[kb],2)}, {vr(Q2[b],2)}, {vr(S[sb],32)}"
    def PV(k, sb, b, vb):
        if o.get("nopv"): return "s_nop 0"
        return f"v_smfmac_f32_32x32x32_bf16 {vr(O[b],16)}, {vr(V[vb]+4*k,4)}, {vr(S[sb]+8*k,8)}, v{V_IDX}"
    def E(i, sb):
        if o.get("noexp"): return "s_nop 0"
        return f"v_exp_f32 v{S[sb]+i}, v{S[sb]+i}"
    def set_addr():
        return [f"v_add_u32 v{V_KA}, s{S_CUR}, v{V_L16}",
                f"v_add_u32 v{V_KB}, s{S_CUR}, v{B_KB}",
                f"v_add_u32 v{V_VA}, s{S_CUR}, v{B_VA}"]
    ool = []
    cnt = [0]
    def dma_hook(n):
        cnt[0] += 1
        lab, back = N(f"dm{cnt[0]}"), N(f"dmb{cnt[0]}")
        blk = [f"LABEL {lab}"]
        for _ in range(n):
            blk += [f"s_mov_b32 m0, s{S_PIECE}", "s_nop 0",
                    f"buffer_load_dwordx4 v{V_L16}, s[{S_KV}:{S_KV+3}], s{S_PIECE} offen lds",
                    f"s_add_u32 s{S_PIECE}, s{S_PIECE}, 8192"]
        blk += [f"s_branch {back}"]
        ool.append(blk)
        return [f"s_cmp_lt_u32 s{S_IT}, s{S_DMAN}", f"s_cbranch_scc1 {lab}", f"LABEL {back}"]
    def bar_hook(tag, sm):
        lab, back = N("bar"+tag), N("barb"+tag)
        blk = [f"LABEL {lab}"]
        its = sorted(o["bars"])
        for j, it in enumerate(its):
            n_out = o["bars"][it][1] - o["bars"][it][0]
            if j < len(its) - 1:
                nx = N(f"bar{tag}_{j}")
                blk += [f"s_cmp_lg_u32 s{S_IT}, {it}", f"s_cbranch_scc1 {nx}", f"s_waitcnt vmcnt({n_out})", "s_barrier", f"s_branch {back}", f"LABEL {nx}"]
            else:
                blk += [f"s_waitcnt vmcnt({n_out})", "s_barrier", f"s_branch {back}"]
        ool.append(blk)
        return [f"s_bitcmp1_b32 s{sm}, s{S_IT}", f"s_cbranch_scc1 {lab}", f"LABEL {back}"]

    def mphase(b, sb, kb, pb, pvb, hooks):
        ps = 1 - sb
        for h in hooks.get("pre", []): a(h)
        if o["p_hi"] is not None: a(f"s_setprio {o['p_hi']}")
        for h in hooks.get("pre2", []): a(h)
        seq = [("QKa", QKa(sb, b, kb)), ("QKb", QKb(sb, b, kb)), ("PV0", PV(0, ps, pb, pvb)), ("QKc", QKc(sb, b, kb)),
               ("PV1", PV(1, ps, pb, pvb)), ("PV2", PV(2, ps, pb, pvb)), ("PV3", PV(3, ps, pb, pvb))]
        for tag, ins in seq:
            a(ins)
            for h in hooks.get(tag, []): a(h)
        if o["p_hi"] is not None: a("s_setprio 0")
    def ephase(sb, hooks={}):
        for i in range(32):
            a(E(i, sb))
            if i == o["mid_at"] - 1 and o["p_mid"]: a(f"s_setprio {o['p_mid']}")
            for h in hooks.get(i, []): a(h)

    a.label(N("run"))
    for b in range(NQ):
        for i in range(16): a(f"v_mov_b32 v{O[b]+i}, 0")
    for i in range(32): a(f"v_mov_b32 v{S[1]+i}, 0")
    a(f"s_mov_b32 s{S_CUR}, 0")
    for x in set_addr(): a(x)
    a(f"s_cmp_lg_u32 s{S_PASS}, 0")
    a(f"s_cbranch_scc1 {N('run2')}")
    if o["woprep"]:
        a(f"s_cmp_eq_u32 s80, 0")
        a(f"s_cbranch_scc1 {N('w0')}")
        a(f"s_waitcnt vmcnt({o['P']-2+8})")
        a(f"s_branch {N('w1')}")
        a.label(N("w0"))
        a(f"s_waitcnt vmcnt({o['P']-2})")
        a.label(N("w1"))
    else:
        a(f"s_waitcnt vmcnt({o['P']-2})")
    a(f"s_barrier")
    if o["stamp"]: a("s_memtime s[62:63]")
    a.label(N("run2"))
    for x in rd_K(0, 0) + rd_V(0, 0): a(x)
    a(f"s_mov_b32 s{S_IT}, 0")
    a(f"s_waitcnt lgkmcnt(0)")
    adv = [f"s_add_u32 s{S_CUR}, s{S_CUR}, 10240", f"s_cmp_eq_u32 s{S_CUR}, {KV_HEAD}", f"s_cselect_b32 s{S_CUR}, 0, s{S_CUR}"]
    wait = ["s_waitcnt lgkmcnt(0)"]
    a(f"s_cmp_lg_u32 s{S_PASS}, 0")
    a(f"s_cbranch_scc1 {N('entryB')}")
    a(f"s_branch {N('entryA')}")
    k1 = rd_K(1, 5120); k0 = rd_K(0, 0)
    sp = lambda l, i: l[i:i+1]
    itst = []
    if o.get("itstamp"):
        itst = ["s_memtime s[66:67]", "s_waitcnt lgkmcnt(0)", f"s_mov_b32 m0, s{S_IT}", "s_nop 0", f"v_writelane_b32 v210, s66, m0"]
    def dma1():
        return [f"s_mov_b32 m0, s{S_PIECE}", "s_nop 0",
                f"buffer_load_dwordx4 v{V_L16}, s[{S_KV}:{S_KV+3}], s{S_PIECE} offen lds",
                f"s_add_u32 s{S_PIECE}, s{S_PIECE}, 8192"]
    def merge(h, tag, extra):
        h = dict(h); h[tag] = h.get(tag, []) + extra; return h
    def body(tag, with_dma, last_it):
        d = (lambda h: merge(h, o["dma_at"], dma1())) if with_dma else (lambda h: h)
        a.raw(".p2align 6")
        a.label(N("loop"+tag))
        for x in bar_hook("y"+tag, S_DMAN): a(x)
        ephase(1)
        a.label(N("entry"+tag))
        mphase(0, 0, 0, 1, 1, d({"pre": bar_hook("x"+tag, S_BARM) + wait + itst, "QKa": sp(k1,0), "QKb": sp(k1,1), "PV0": sp(k1,2)}))
        ephase(0)
        h = {"QKc": rd_V(1, 5120), "PV3": adv + set_addr()}
        mphase(1, 1, 0, 0, 0, merge(h, "PV1", dma1()) if with_dma else h)
        ephase(1)
        mphase(0, 0, 1, 1, 0, d({"pre": wait, "QKa": sp(k0,0), "QKb": sp(k0,1), "PV0": sp(k0,2)}))
        ephase(0)
        h = {"QKc": rd_V(0, 0), "PV2": [f"s_add_u32 s{S_IT}, s{S_IT}, 1"], "PV3": [f"s_cmp_lt_u32 s{S_IT}, {last_it}"]}
        mphase(1, 1, 1, 0, 1, merge(h, "PV1", dma1()) if with_dma else h)
        a(f"s_cbranch_scc1 {N('loop'+tag)}")
    body("A", True, o["NA"])
    body("B", False, 16)
    ephase(1)
    if o["stamp"]: a("s_memtime s[64:65]")
    a("s_setprio 0")
    a("s_nop 0")
    for kk in range(4): a(PV(kk, 1, 1, 1))
    T = V_T
    LS = [T, T+1]
    a(f"v_mbcnt_lo_u32_b32 v{T+4}, -1, 0")
    a(f"v_mbcnt_hi_u32_b32 v{T+4}, -1, v{T+4}")
    a(f"v_and_b32 v{T+5}, 31, v{T+4}")
    a(f"v_lshlrev_b32 v{T+5}, 5, v{T+5}")
    a(f"v_lshrrev_b32 v{T+6}, 5, v{T+4}")
    a(f"v_lshl_add_u32 v{T+6}, v{T+6}, 4, v{T+5}")
    a(f"s_mov_b64 s[{S_T}:{S_T+1}], 0")
    Z = S[0]
    for b in range(NQ):
        if b == 1:
            a("s_nop 7")
        a(f"v_mov_b32 v{T+2}, v{O[b]+8}")
        a(f"v_mov_b32 v{LS[b]}, v{O[b]+8}")
        a(f"v_pk_mul_f32 {vr(Z,2)}, {vr(O[b],2)}, 0")
        for i in range(1, 6):
            a(f"v_pk_fma_f32 {vr(Z,2)}, {vr(O[b]+2*i,2)}, 0, {vr(Z,2)}")
            if i == 1: a(f"v_permlane32_swap_b32 v{T+2}, v{LS[b]}")
        a(f"v_cmp_u_f32 vcc, v{Z}, v{Z+1}")
        a(f"s_or_b64 s[{S_T}:{S_T+1}], s[{S_T}:{S_T+1}], vcc")
        a(f"v_cmp_nle_f32 vcc, 0x2b800000, v{LS[b]}")
        a(f"s_or_b64 s[{S_T}:{S_T+1}], s[{S_T}:{S_T+1}], vcc")
        a(f"v_cmp_nge_f32 vcc, 0x5d800000, v{LS[b]}")
        a(f"s_or_b64 s[{S_T}:{S_T+1}], s[{S_T}:{S_T+1}], vcc")
    a(f"s_cmp_eq_u64 s[{S_T}:{S_T+1}], 0")
    if o.get("nofb"): a(f"s_branch {N('store')}")
    a(f"s_cbranch_scc1 {N('store')}")
    a(f"s_cmp_eq_u32 s{S_PASS}, 0")
    a(f"s_cbranch_scc1 {N('slow')}")
    a.label(N("store"))
    if o["woprep"]:
        a(f"s_cmp_eq_u32 s80, 0")
        a(f"s_cbranch_scc1 {N('nowos')}")
        a(f"s_lshl_b32 s{t}, s68, 10")
        a(f"s_add_u32 s{t}, s{t}, {WO_OFF}")
        srd(a, S_Q, S_WS, f"s{t}", 1024)
        for j in range(4): a(f"v_lshl_or_b32 v{212+j}, v{216+j}, 16, v{212+j}")
        a(f"buffer_store_dwordx4 v[212:215], v{V_L16}, s[{S_Q}:{S_Q+3}], 0 offen")
        a.label(N("nowos"))
    for b in range(NQ):
        R = S[0] + 16 + 2*b
        a(f"v_rcp_f32 v{R}, v{LS[b]}")
        a("s_nop 0")
        for i in range(6):
            a(f"v_pk_mul_f32 {vr(O[b]+2*i,2)}, {vr(O[b]+2*i,2)}, {vr(R,2)} op_sel_hi:[1,0]")
        P = S[0] + 8*b
        for i in range(6):
            a(f"v_cvt_pk_bf16_f32 v{P+i}, v{O[b]+2*i}, v{O[b]+2*i+1}")
        a("s_nop 1")
        a(f"v_permlane32_swap_b32 v{P}, v{P+2}")
        a(f"v_permlane32_swap_b32 v{P+1}, v{P+3}")
        a(f"buffer_store_dwordx4 {vr(P,4)}, v{T+6}, s[{S_O1}:{S_O1+3}], 0 offen offset:{1024*b}")
        a(f"s_mov_b32 exec_hi, 0")
        a(f"buffer_store_dwordx2 {vr(P+4,2)}, v{T+5}, s[{S_O2}:{S_O2+3}], 0 offen offset:{1024*b}")
        a(f"s_mov_b64 exec, -1")
    if o["stamp"]:
        a(f"s_memtime s[{S_ST+4}:{S_ST+5}]")
        a(f"s_memrealtime s[{S_ST+6}:{S_ST+7}]")
        a("s_waitcnt lgkmcnt(0)")
        a(f"s_sub_u32 s{S_ST+4}, s{S_ST+4}, s{S_ST}")
        a(f"s_sub_u32 s{S_ST+6}, s{S_ST+6}, s{S_ST+2}")
        a(f"s_lshl_b32 s{t}, s2, 3")
        a(f"s_add_u32 s{t}, s{t}, s{S_WAVE}")
        a(f"s_lshl_b32 s{t}, s{t}, 5")
        a(f"s_add_u32 s{t}, s{t}, {WS_END}")
        srd(a, S_Q, S_WS, f"s{t}", 32)
        a(f"s_sub_u32 s62, s62, s{S_ST}")
        a(f"s_sub_u32 s64, s64, s{S_ST}")
        a(f"v_mov_b32 v{T+5}, s62")
        a(f"v_mov_b32 v{T+6}, s64")
        a(f"v_mov_b32 v{T}, s{S_ST+4}")
        a(f"v_mov_b32 v{T+1}, s{S_ST+6}")
        a(f"v_mov_b32 v{T+2}, s{S_ST+2}")
        a(f"v_mov_b32 v{T+3}, s{S_PASS}")
        a(f"v_mov_b32 v{T+4}, 0")
        a(f"s_mov_b64 exec, 1")
        for i, r in enumerate([T, T+1, T+2, T+3, T+5, T+6]):
            a(f"buffer_store_dword v{r}, v{T+4}, s[{S_Q}:{S_Q+3}], 0 offen offset:{4*i}")
        if o.get("itstamp"):
            a(f"s_mov_b64 exec, 0xffff")
            a(f"s_lshl_b32 s{t}, s2, 3")
            a(f"s_add_u32 s{t}, s{t}, s{S_WAVE}")
            a(f"s_lshl_b32 s{t}, s{t}, 6")
            a(f"s_add_u32 s{t}, s{t}, {WS_END + 65536}")
            srd(a, S_Q, S_WS, f"s{t}", 64)
            a(f"v_mbcnt_lo_u32_b32 v{T}, -1, 0")
            a(f"v_lshlrev_b32 v{T}, 2, v{T}")
            a(f"v_subrev_u32 v210, s{S_ST}, v210")
            a(f"buffer_store_dword v210, v{T}, s[{S_Q}:{S_Q+3}], 0 offen")
    a("s_endpgm")
    for blk in ool:
        for x in blk: a(x)

    a.label(N("slow"))
    MX = [T+7, T+8]
    for b in range(NQ):
        a(f"v_mov_b32 v{MX[b]}, 0xff800000")
    a(f"s_mov_b32 s{S_CUR}, 0")
    a.label(N("mx"))
    for x in set_addr(): a(x)
    for x in rd_K(0, 0): a(x)
    a("s_waitcnt lgkmcnt(0)")
    for b in range(NQ):
        a(f"v_mfma_f32_32x32x16_bf16 {vr(S[b],16)}, {vr(K1[0][0],4)}, {vr(Q1[b],4)}, 0")
        a(f"v_mfma_f32_32x32x16_bf16 {vr(S[b]+16,16)}, {vr(K1[0][1],4)}, {vr(Q1[b],4)}, 0")
    a("s_nop 15")
    for b in range(NQ):
        a(QKc(b, b, 0))
    a("s_nop 15"); a("s_nop 7")
    for b in range(NQ):
        for i in range(16):
            a(f"v_max3_f32 v{MX[b]}, v{S[b]+2*i}, v{S[b]+2*i+1}, v{MX[b]}")
    a(f"s_add_u32 s{S_CUR}, s{S_CUR}, 5120")
    a(f"s_cmp_lt_u32 s{S_CUR}, {KV_HEAD}")
    a(f"s_cbranch_scc1 {N('mx')}")
    for b in range(NQ):
        a(f"v_mov_b32 v{T+2}, v{MX[b]}")
        a("s_nop 1")
        a(f"v_permlane32_swap_b32 v{T+2}, v{MX[b]}")
        a("s_nop 1")
        a(f"v_max_f32 v{T+2}, v{T+2}, v{MX[b]}")
        for i in range(16):
            a(f"v_sub_f32 v{M[b]+i}, 0, v{T+2}")
    a(f"s_mov_b32 s{S_BARM}, 0")
    a(f"s_mov_b32 s{S_DMAN}, 0")
    a(f"s_mov_b32 s{S_PASS}, 1")
    a(f"s_branch {N('run')}")
    a.label(N("end"))
    a("s_endpgm")
    return a.text(), kernel_desc(name, NV, NV)

if __name__ == "__main__":
    body, desc = gen_k2()
    print(body); print(desc)
```

```python
from common import *

def gen_k3(name="outp_kernel", opt=None):
    o = dict(stamp=False, pprio=3)
    if opt: o.update(opt)
    a = Asm()
    N = lambda s: f"L_{name}_{s}"
    S_X1, S_X2, S_W, S_OUT = 4, 8, 12, 16
    S_WAVE, S_BR, S_SB, S_NT = 20, 21, 22, 23
    S_WS, S_OP = 24, 26
    S_PC, S_T = 30, 32
    S_ST = 60
    t = S_T
    kernel_header(a, name)
    a("s_cmp_ge_u32 s2, 256")
    a(f"s_cbranch_scc1 {N('end')}")
    a(f"s_load_dwordx2 s[{S_WS}:{S_WS+1}], s[0:1], {KA_WS}")
    a(f"s_load_dwordx2 s[{S_OP}:{S_OP+1}], s[0:1], {KA_OUT}")
    if o["stamp"]:
        a(f"s_memtime s[{S_ST}:{S_ST+1}]")
        a(f"s_memrealtime s[{S_ST+2}:{S_ST+3}]")
    a("v_lshrrev_b32 v1, 6, v0")
    a("v_and_b32 v0, 63, v0")
    a(f"v_readfirstlane_b32 s{S_WAVE}, v1")
    a(f"s_and_b32 s{t}, s2, 7")
    a(f"s_lshr_b32 s{t+1}, s2, 3")
    a(f"s_lshr_b32 s{S_BR}, s{t}, 2")
    a(f"s_and_b32 s{t+2}, s{t}, 3")
    a(f"s_lshl_b32 s{t+2}, s{t+2}, 2")
    a(f"s_lshr_b32 s{t+3}, s{t+1}, 3")
    a(f"s_add_u32 s{S_SB}, s{t+2}, s{t+3}")
    a(f"s_and_b32 s{S_NT}, s{t+1}, 7")
    a("v_lshlrev_b32 v1, 4, v0")
    a(f"s_cmp_ge_u32 s{S_WAVE}, 4")
    a(f"s_cbranch_scc0 {N('cons')}")
    if o["pprio"]: a(f"s_setprio {o['pprio']}")
    a(f"s_lshl_b32 s{t}, s{S_BR}, 3")
    a(f"s_add_u32 s{t}, s{t}, s{S_NT}")
    a(f"s_mul_i32 s{t}, s{t}, {100*1024}")
    a(f"s_add_u32 s{t}, s{t}, {WO_OFF}")
    a(f"s_sub_u32 s{S_PC}, s{S_WAVE}, 4")
    a(f"s_mul_i32 s{S_PC}, s{S_PC}, 5120")
    a("s_waitcnt lgkmcnt(0)")
    srd(a, S_W, S_WS, f"s{t}", 100*1024)
    def issue():
        for j in range(5):
            a(f"s_add_u32 m0, s{S_PC}, {1024*j}")
            a(f"s_add_u32 s{t}, s{S_PC}, {1024*j}")
            a(f"buffer_load_dwordx4 v1, s[{S_W}:{S_W+3}], s{t} offen lds")
        a(f"s_add_u32 s{S_PC}, s{S_PC}, 20480")
    issue(); issue()
    for c in range(5):
        a(f"s_waitcnt vmcnt({5 if c < 4 else 0})")
        a("s_barrier")
        if c + 2 < 5: issue()
    a("s_endpgm")
    a.label(N("cons"))
    ACC = lambda i, T: 16 + 4*(5*i + T)
    WF = lambda s, T: 56 + 20*s + 4*T
    XF = lambda c, st, i: 96 + 32*(c % 3) + 8*st + 4*i
    V_XO, V_WA, V_ST = 2, 3, 4
    a("v_and_b32 v5, 15, v0")
    a("v_lshrrev_b32 v6, 4, v0")
    a("v_lshrrev_b32 v7, 1, v6")
    a("v_and_b32 v6, 1, v6")
    a("v_lshlrev_b32 v7, 16, v7")
    a("v_lshl_add_u32 v7, v5, 5, v7")
    a(f"v_lshl_add_u32 v{V_XO}, v6, 4, v7")
    a(f"v_mov_b32 v{V_WA}, v1")
    a(f"s_lshl_b32 s{t}, s{S_SB}, 7")
    a(f"s_lshl_b32 s{t+1}, s{S_WAVE}, 5")
    a(f"s_add_u32 s{t}, s{t}, s{t+1}")
    a(f"s_lshl_b32 s{t+1}, s{t}, 5")
    a(f"s_lshl_b32 s{t+2}, s{S_BR}, 21")
    a(f"s_add_u32 s{t+2}, s{t+2}, s{t+1}")
    a(f"s_add_u32 s{t+2}, s{t+2}, {O1_OFF}")
    a(f"s_lshl_b32 s{t+3}, s{S_BR}, 19")
    a(f"s_add_u32 s{t+3}, s{t+3}, s{t+1}")
    a(f"s_add_u32 s{t+3}, s{t+3}, {O2_OFF}")
    a(f"s_mul_i32 s{t+4}, s{t}, 2560")
    a(f"s_mul_i32 s{t+5}, s{S_BR}, 1280")
    a(f"s_add_u32 s{t+4}, s{t+4}, s{t+5}")
    a(f"s_mul_i32 s{t+5}, s{S_NT}, 160")
    a(f"s_add_u32 s{t+4}, s{t+4}, s{t+5}")
    a("v_lshrrev_b32 v6, 4, v0")
    a("v_and_b32 v7, 1, v6")
    a("v_lshl_add_u32 v7, v7, 4, v5")
    a("v_mul_u32_u24 v7, 2560, v7")
    a("v_lshrrev_b32 v6, 1, v6")
    a(f"v_lshl_add_u32 v{V_ST}, v6, 4, v7")
    a("s_waitcnt lgkmcnt(0)")
    srd(a, S_X1, S_WS, f"s{t+2}", 32*65536)
    srd(a, S_X2, S_WS, f"s{t+3}", 8*65536)
    srd(a, S_OUT, S_OP, f"s{t+4}", 32*2560)
    S_XS = t+6
    def xloads(c):
        r = []
        for st in range(4):
            step = 4*c + st
            sd, pl = (S_X1, 2*step) if step < 16 else (S_X2, 2*step - 32)
            for i in range(2):
                r.append([f"s_mov_b32 s{S_XS}, {pl*65536}", f"buffer_load_dwordx4 {vr(XF(c,st,i),4)}, v{V_XO}, s[{sd}:{sd+3}], s{S_XS} offen offset:{512*i}"])
        return r
    for c in range(2):
        for x in xloads(c):
            for y in x: a(y)
    def wreads(step, s):
        return [f"ds_read_b128 {vr(WF(s,T),4)}, v{V_WA} offset:{(step*5 + T)*1024}" for T in range(5)]
    a(f"v_add_u32 v5, {60*1024}, v{V_WA}")
    def wreads2(step, s):
        if step < 12: return wreads(step, s)
        return [f"ds_read_b128 {vr(WF(s,T),4)}, v5 offset:{(step*5 + T - 60)*1024}" for T in range(5)]
    a("s_barrier")
    if o["stamp"]: a("s_memtime s[64:65]")
    for x in wreads2(0, 0): a(x)
    for c in range(5):
        xl = xloads(c+2) if c + 2 < 5 else []
        a(f"s_waitcnt vmcnt({8 if c < 4 else 0})")
        for st in range(4):
            step = 4*c + st
            s = step & 1
            a("s_waitcnt lgkmcnt(0)")
            if st == 3 and c < 4: a("s_barrier")
            rd = wreads2(step+1, 1-s) if step < 19 else []
            n = 0
            for T in range(5):
                for i in range(2):
                    C = "0" if step == 0 else vr(ACC(i,T),4)
                    a(f"v_mfma_f32_16x16x32_bf16 {vr(ACC(i,T),4)}, {vr(WF(s,T),4)}, {vr(XF(c,st,i),4)}, {C}")
                    if n < len(rd): a(rd[n])
                    elif xl and n >= 5 and n < 7:
                        for y in xl.pop(0): a(y)
                    n += 1
    if o["stamp"]: a("s_memtime s[66:67]")
    a("s_nop 7")
    for T in range(5):
        X, Y = ACC(0, T), ACC(1, T)
        a(f"v_cvt_pk_bf16_f32 v{X}, v{X}, v{X+1}")
        a(f"v_cvt_pk_bf16_f32 v{X+1}, v{X+2}, v{X+3}")
        a(f"v_cvt_pk_bf16_f32 v{X+2}, v{Y}, v{Y+1}")
        a(f"v_cvt_pk_bf16_f32 v{X+3}, v{Y+2}, v{Y+3}")
    for T in range(5):
        X = ACC(0, T)
        a(f"v_permlane16_swap_b32 v{X}, v{X+2}")
        a(f"v_permlane16_swap_b32 v{X+1}, v{X+3}")
        a(f"buffer_store_dwordx4 {vr(X,4)}, v{V_ST}, s[{S_OUT}:{S_OUT+3}], 0 offen offset:{32*T}")
    if o["stamp"]:
        a("s_memtime s[68:69]")
        a("s_memrealtime s[70:71]")
        a("s_waitcnt lgkmcnt(0)")
        a(f"s_lshl_b32 s{t}, s2, 2")
        a(f"s_add_u32 s{t}, s{t}, s{S_WAVE}")
        a(f"s_lshl_b32 s{t}, s{t}, 5")
        a(f"s_add_u32 s{t}, s{t}, {WS_END}")
        srd(a, S_X1, S_WS, f"s{t}", 32)
        for i, (x, y) in enumerate([(68, S_ST), (70, S_ST+2), (64, S_ST), (66, S_ST)]):
            a(f"s_sub_u32 s{x}, s{x}, s{y}")
            a(f"v_mov_b32 v{4+i}, s{x}")
        a(f"v_mov_b32 v8, s{S_ST+2}")
        a("v_mov_b32 v9, 0")
        a("s_mov_b64 exec, 1")
        for i in range(5): a(f"buffer_store_dword v{4+i}, v9, s[{S_X1}:{S_X1+3}], 0 offen offset:{4*i}")
    a("s_endpgm")
    a.label(N("end"))
    a("s_endpgm")
    return a.text(), kernel_desc(name, 192, 192)

if __name__ == "__main__":
    b, d = gen_k3(); print(b); print(d)
```

```python
import sys; sys.path.insert(0, "gen")
import k1, k2, k3
from common import *
HEADER = """; Kernarg layout (88 bytes, pointers only, base s[0:1]):
; @launch kernel=proj_kernel grid=(256,1,1) block=(512,1,1) lds=157696
; @launch kernel=attn_kernel grid=(256,1,1) block=(512,1,1) lds=163840
; @launch kernel=outp_kernel grid=(256,1,1) block=(512,1,1) lds=102400
.amdgcn_target "amdgcn-amd-amdhsa--gfx950"
"""
def full(o1=None, o2=None, o3=None):
    b1, d1 = k1.gen_k1("proj_kernel", o1)
    b2, d2 = k2.gen_k2("attn_kernel", o2)
    b3, d3 = k3.gen_k3("outp_kernel", o3)
    return HEADER + b1 + b2 + b3 + d1 + d2 + d3
if __name__ == "__main__":
    out = sys.argv[1] if len(sys.argv) > 1 else "concat_heads__grouped_kv_mqa__mha_block__prompt.s"
    open(out, "w").write(full())
    print("wrote", out)
```
